```python
import torch

def _softmax(x, axis=-1):
    return torch.softmax(x, dim=axis)
def _gelu(x):
    return torch.nn.functional.gelu(x, approximate="tanh")
def _silu(x):
    return torch.nn.functional.silu(x)
def _sigmoid(x):
    return torch.sigmoid(x)
def _layernorm(x, axis=-1, eps=1e-5):
    m = x.mean(dim=axis, keepdim=True)
    v = x.var(dim=axis, keepdim=True, unbiased=False)
    return (x - m) / torch.sqrt(v + eps)
def _scatter_add(tgt, idx, src, axis=0):
    return tgt.clone().index_add_(axis, idx, src)
def _segment_sum(src, seg, n):
    out = torch.zeros((n,) + src.shape[1:], dtype=src.dtype)
    return out.index_add_(0, seg, src)
def _pad(x, pw):
    flat = tuple(v for pair in reversed(pw) for v in pair)
    return torch.nn.functional.pad(x, flat)

kernel_name = 'recurrent_scan__sliding_block_cached__geglu_ffn__decode'

def setup_inputs():

    _w = (lambda a: (lambda t: t.to(torch.bfloat16) if t.is_floating_point() else t)(torch.as_tensor(a)))
    def _A_setup():
        B, Sq, D = 2, 1, 640
        Hq, Hkv, Sk, Dh = 32, 32, 8192, 128
        assert Hq % Hkv == 0, (Hq, Hkv)
        return {
            "x": _w((lambda *s: torch.randn(*s, dtype=torch.bfloat16) * 0.05)(B, Sq, D)),
            "k_cache": _w((lambda *s: torch.randn(*s, dtype=torch.bfloat16) * 0.8)(B, Hkv, Sk, Dh)),
            "v_cache": _w((lambda *s: torch.randn(*s, dtype=torch.bfloat16) * 0.2)(B, Hkv, Sk, Dh)),
            "wq": _w((lambda *s: torch.randn(*s, dtype=torch.bfloat16) * 0.8)(D, Hq * Dh) * (D ** -0.5)),
            "wo": _w((lambda *s: torch.randn(*s, dtype=torch.bfloat16) * 0.2)(Hq * Dh, D) * ((Hq * Dh) ** -0.5)),
        }
    _A_in = _A_setup()

    def _B_setup():
        B, S, D, F = 2, 1, 640, 1728
        return {
            "x": _w((lambda *s: torch.randn(*s, dtype=torch.bfloat16) * 0.05)(B, S, D)),
            "w_gate": _w((lambda *s: torch.randn(*s, dtype=torch.bfloat16) * 0.1)(D, F)),
            "w_up": _w((lambda *s: torch.randn(*s, dtype=torch.bfloat16) * 0.1)(D, F)),
            "w_down": _w((lambda *s: torch.randn(*s, dtype=torch.bfloat16) * 0.1)(F, D)),
        }
    _B_in = _B_setup()

    return {
        "A_x": _A_in["x"],
        "A_k_cache": _A_in["k_cache"],
        "A_v_cache": _A_in["v_cache"],
        "A_wq": _A_in["wq"],
        "A_wo": _A_in["wo"],
        "B_x": _B_in["x"],
        "B_w_gate": _B_in["w_gate"],
        "B_w_up": _B_in["w_up"],
        "B_w_down": _B_in["w_down"],
    }

def reference(A_x, A_k_cache, A_v_cache, A_wq, A_wo, B_x, B_w_gate, B_w_up, B_w_down):
    def _A_ref(x, k_cache, v_cache, wq, wo):
        B, Sq, D = x.shape
        Hq, Dh = 32, 128
        Hkv, Sk = k_cache.shape[1], k_cache.shape[2]
        W = min(4096, max(256, Sk // 4))
        rep = Hq // Hkv
        q = (lambda x, *d: x.permute(*d))((x @ wq).reshape(B, Sq, Hq, Dh), 0, 2, 1, 3)
        k = (lambda x, n, axis: torch.repeat_interleave(x, n, dim=axis))(k_cache[:, :, Sk - W:, :], rep, axis=1)
        v = (lambda x, n, axis: torch.repeat_interleave(x, n, dim=axis))(v_cache[:, :, Sk - W:, :], rep, axis=1)
        scores = torch.einsum("bhqd,bhkd->bhqk", q, k) * (Dh ** -0.5)
        p = _softmax(scores, axis=-1)
        o = torch.einsum("bhqk,bhkd->bhqd", p, v)
        return (lambda x, *d: x.permute(*d))(o, 0, 2, 1, 3).reshape(B, Sq, Hq * Dh) @ wo

    def _B_ref(x, w_gate, w_up, w_down):
        return (_gelu(x @ w_gate) * (x @ w_up)) @ w_down

    x = A_x
    xn = _layernorm(x, axis=-1)
    s = _A_ref(xn, A_k_cache, A_v_cache, A_wq, A_wo)
    g = _silu(_B_ref(xn, B_w_gate, B_w_up, B_w_down))
    return x + s * g
```

```python
import re
NAME = "recurrent_scan__sliding_block_cached__geglu_ffn__decode"
HEADER_COMMENT = open("cdna_kernels/%s.s.ref" % NAME).read().split("; Override launch geometry")[0]

TRANS = ("v_exp_f32", "v_log_f32", "v_rcp_f32", "v_rsq_f32", "v_sqrt_f32", "v_sin_f32", "v_cos_f32")

def regs_of(tok):
    tok = tok.strip()
    tok = re.sub(r"^-|^abs\(|\)$|^\|", "", tok).rstrip("|")
    m = re.fullmatch(r"([vsa])(\d+)", tok)
    if m: return [(m.group(1), int(m.group(2)))]
    m = re.fullmatch(r"([vsa])\[(\d+):(\d+)\]", tok)
    if m: return [(m.group(1), i) for i in range(int(m.group(2)), int(m.group(3)) + 1)]
    if tok == "vcc": return [("s", 106), ("s", 107)]
    if tok == "vcc_lo": return [("s", 106)]
    if tok == "vcc_hi": return [("s", 107)]
    if tok == "exec": return [("s", 126), ("s", 127)]
    return []

class Ins:
    pass

def parse(line):
    line = line.split(";")[0].strip()
    if not line or line.endswith(":") or line.startswith("."): return None
    parts = line.split(None, 1)
    mn = parts[0]
    rest = parts[1] if len(parts) > 1 else ""
    ops, cur, depth = [], "", 0
    for ch in rest:
        if ch == "[": depth += 1
        if ch == "]": depth -= 1
        if ch == "," and depth == 0:
            ops.append(cur.strip()); cur = ""
        else:
            cur += ch
    if cur.strip(): ops.append(cur.strip())
    mods = ""
    if ops:
        last = ops[-1].split(None, 1)
        ops[-1] = last[0]
        mods = last[1] if len(last) > 1 else ""
    return mn, ops, mods

def classify(mn, ops, mods):
    d = dict(kind="other", wr=[], rd=[], dpp=False, trans=False, mfma=False, srcC=[], srcAB=[], store_data=[], wide=False, perm=False, lane_rd=False)
    R = lambda i: regs_of(ops[i]) if i < len(ops) else []
    allr = lambda a: [r for i in range(a, len(ops)) for r in regs_of(ops[i])]
    base = mn.replace("_e32", "").replace("_e64", "")
    if base.startswith("v_mfma"):
        d.update(kind="mfma", mfma=True, wr=R(0), srcAB=R(1) + R(2), srcC=R(3), rd=R(1) + R(2) + R(3))
    elif base.startswith("v_"):
        d["kind"] = "valu"
        d["dpp"] = ("_dpp" in base) or any(k in mods for k in ("quad_perm", "row_", "wave_"))
        b2 = base.replace("_dpp", "")
        d["trans"] = b2 in TRANS
        if b2.startswith("v_cmp"):
            d["wr"] = R(0); d["rd"] = allr(1)
        elif b2.startswith("v_permlane") and "swap" in b2:
            d["wr"] = R(0) + R(1); d["rd"] = R(0) + R(1); d["perm"] = True
        elif b2 in ("v_readfirstlane_b32", "v_readlane_b32"):
            d["wr"] = R(0); d["rd"] = allr(1); d["lane_rd"] = True
        elif b2 in ("v_add_co_u32", "v_sub_co_u32", "v_addc_co_u32", "v_subb_co_u32"):
            d["wr"] = R(0) + R(1); d["rd"] = allr(2)
        elif b2 in ("v_fmac_f32", "v_dot2c_f32_bf16", "v_pk_fmac_f16", "v_mac_f32"):
            d["wr"] = R(0); d["rd"] = allr(0)
        else:
            d["wr"] = R(0); d["rd"] = allr(1)
            if b2 == "v_cndmask_b32" and len(ops) == 3: d["rd"] += regs_of("vcc")
            if d["dpp"]: d["rd"] += R(0)
    elif base.startswith("ds_"):
        d["kind"] = "ds"
        if base.startswith("ds_read") or base.startswith("ds_bpermute") or base.startswith("ds_permute") or base.startswith("ds_swizzle"):
            d["wr"] = R(0); d["rd"] = allr(1)
        else:
            d["rd"] = allr(0)
    elif base.startswith(("buffer_", "global_", "flat_")):
        d["kind"] = "vmem"
        if "load" in base:
            d["wr"] = R(0); d["rd"] = allr(1)
        elif "store" in base:
            d["rd"] = allr(0)
            d["store_data"] = R(0) if base.startswith("buffer_") else R(1)
            d["wide"] = base.endswith(("x3", "x4"))
        else:
            d["rd"] = allr(0)
    elif base.startswith("s_"):
        d["kind"] = "salu"
        if base.startswith(("s_cmp", "s_cbranch", "s_branch", "s_waitcnt", "s_nop", "s_barrier", "s_sleep", "s_setprio", "s_endpgm", "s_bitcmp")):
            d["rd"] = allr(0)
        else:
            d["wr"] = R(0); d["rd"] = allr(1)
            if "saveexec" in base: d["wr"] += regs_of("exec")
    return d

class Asm:
    def __init__(self, auto=True):
        self.lines = []
        self.lab = 0
        self.auto = auto
        self.t = 0
        self.last = {}
        self.cread = {}
        self.sdata = {}
        self.nops = 0
    def raw(self, s):
        self.lines.append(s)
    def need(self, c):
        tmin = self.t
        def req(reg, n, kinds):
            nonlocal tmin
            w = self.last.get(reg)
            if w and w[1] in kinds:
                tmin = max(tmin, w[0] + 1 + n)
        k = c["kind"]
        for r in c["rd"]:
            if r[0] in "va":
                if k == "valu":
                    if c["dpp"]: req(r, 2, ("valu", "trans"))
                    if c["perm"]: req(r, 2, ("valu", "trans"))
                    if c["lane_rd"]: req(r, 1, ("valu", "trans"))
                    if not c["trans"]: req(r, 1, ("trans",))
                    req(r, 8, ("mfma",))
                elif k == "mfma":
                    req(r, 2, ("valu", "trans"))
                    if r in c["srcAB"]: req(r, 8, ("mfma",))
                    elif r in c["srcC"]:
                        w = self.last.get(r)
                        if w and w[1] == "mfma" and w[2] != tuple(c["srcC"]): req(r, 6, ("mfma",))
                elif k in ("vmem", "ds"):
                    req(r, 8, ("mfma",))
            else:
                if k == "valu":
                    n = 4 if (c["lane_rd"] and False) else 2
                    req(r, n, ("valu", "trans"))
                elif k == "vmem":
                    req(r, 5, ("valu", "trans"))
                elif k == "salu":
                    req(r, 1, ("valu", "trans"))
        for r in c["wr"]:
            if r[0] in "va":
                if k in ("valu", "vmem", "ds"):
                    req(r, 8, ("mfma",))
                if k == "valu":
                    if r in self.cread: tmin = max(tmin, self.cread[r] + 1 + 3)
                    if r in self.sdata: tmin = max(tmin, self.sdata[r] + 1 + 2)
                elif r in self.sdata: tmin = max(tmin, self.sdata[r] + 1 + 1)
                if k == "mfma":
                    w = self.last.get(r)
                    if w and w[1] == "mfma" and w[2] != tuple(c["wr"]): req(r, 6, ("mfma",))
        return tmin
    def ins(self, line):
        p = parse(line)
        if p is None:
            self.lines.append(line.strip() if line.strip().endswith(":") else "    " + line.strip())
            return
        mn, ops, mods = p
        c = classify(mn, ops, mods)
        if mn == "s_nop":
            self.lines.append("    " + line.strip())
            self.t += int(ops[0], 0) + 1
            return
        if self.auto:
            tmin = self.need(c)
            while tmin > self.t:
                n = min(tmin - self.t, 16)
                self.lines.append("    s_nop %d" % (n - 1))
                self.t += n
                self.nops += n
        self.lines.append("    " + line.strip())
        kind = c["kind"]
        if c["trans"]: kind = "trans"
        for r in c["wr"]:
            self.last[r] = (self.t, kind, tuple(c["wr"]))
        if c["mfma"]:
            for r in c["srcC"]: self.cread[r] = self.t
        if c["wide"]:
            for r in c["store_data"]: self.sdata[r] = self.t
        self.t += 1
    def __call__(self, s=""):
        for l in s.strip("\n").split("\n"):
            if l.strip(): self.ins(l)
    def fence(self, n=9):
        self.ins("s_nop %d" % (min(n, 16) - 1))
    def label(self, name):
        self.lines.append(name + ":")
    def newlabel(self, p="L"):
        self.lab += 1
        return "%s_%d" % (p, self.lab)
    def text(self):
        return "\n".join(self.lines) + "\n"

def wrap(body, grid, block, lds, nvgpr, nsgpr=102, accum=None, kname=None):
    kname = kname or NAME + "_kernel"
    if accum is None:
        accum = min(256, (nvgpr + 3) // 4 * 4)
    s = HEADER_COMMENT
    s += "; @launch grid=(%d,1,1) block=(%d,1,1) lds=%d\n" % (grid, block, lds)
    s += '.amdgcn_target "amdgcn-amd-amdhsa--gfx950"\n.text\n.globl %s\n.p2align 8\n.type %s,@function\n%s:\n' % (kname, kname, kname)
    s += body
    s += "    s_endpgm\n"
    s += '.section .rodata,"a"\n.p2align 6\n.amdhsa_kernel %s\n' % kname
    s += "  .amdhsa_next_free_vgpr %d\n  .amdhsa_next_free_sgpr %d\n  .amdhsa_accum_offset %d\n" % (nvgpr, nsgpr, accum)
    s += "  .amdhsa_group_segment_fixed_size 0\n  .amdhsa_kernarg_size 96\n  .amdhsa_user_sgpr_count 2\n"
    s += "  .amdhsa_user_sgpr_kernarg_segment_ptr 1\n  .amdhsa_system_sgpr_workgroup_id_x 1\n"
    s += "  .amdhsa_float_denorm_mode_32 3\n"
    s += ".end_amdhsa_kernel\n"
    return s
```

```python
import sys
from asmlib import *

WS_Q1 = 0x10000
WS_G1 = 0x50000
WS_O2 = 0x90000
WS_S3 = 0xD0000
WS_F3 = 0x100000
WS_SIZE = 0x140000
WS_STAMP = 0x10000000
L_XA = 0
L_XB = 5120
L_QL = 10240
L_FLAG = 10496
L_MX = 10512 + 16
L_LB = 10560
L_HB = 10752
L_OB = 11264
L_YB = 15360
LDS_SIZE = 23552

LOG2E = 0x3fb8aa3b
SPIN = 400000

def f2u(x):
    import struct
    return struct.unpack("<I", struct.pack("<f", x))[0]

def vr(b, n=4):
    return "v[%d:%d]" % (b, b + n - 1)

class Gen:
    def __init__(self, stamps=False, kvflags="nt", wflags="nt"):
        self.a = Asm()
        self.stamps = stamps
        self.kvflags = kvflags
        self.wflags = wflags

    def srd(self, d, lo, size):
        a = self.a
        a("s_mov_b32 s%d, s%d" % (d, lo))
        a("s_and_b32 s%d, s%d, 0xffff" % (d + 1, lo + 1))
        a("s_mov_b32 s%d, %s" % (d + 2, size if isinstance(size, str) else hex(size)))
        a("s_mov_b32 s%d, 0x20000" % (d + 3))

    def dpp(self, op, d, s0, s1, ctl):
        self.a("%s_dpp v%d, v%d, v%d %s row_mask:0xf bank_mask:0xf" % (op, d, s0, s1, ctl))

    def allreduce32(self, S, U, op="v_add_f32"):
        for ctl in ("quad_perm:[1,0,3,2]", "quad_perm:[2,3,0,1]", "row_half_mirror", "row_mirror"):
            self.dpp(op, S, S, S, ctl)
        self.a("v_mov_b32 v%d, v%d" % (U, S))
        self.a("v_permlane16_swap_b32 v%d, v%d" % (S, U))
        self.a("%s v%d, v%d, v%d" % (op, S, S, U))

    def cross_rows(self, S, U, op="v_add_f32"):
        self.a("v_mov_b32 v%d, v%d" % (U, S))
        self.a("v_permlane16_swap_b32 v%d, v%d" % (S, U))
        self.a("%s v%d, v%d, v%d" % (op, S, S, U))
        self.a("v_mov_b32 v%d, v%d" % (U, S))
        self.a("v_permlane32_swap_b32 v%d, v%d" % (S, U))
        self.a("%s v%d, v%d, v%d" % (op, S, S, U))

    def stamp(self, sreg):
        if self.stamps:
            self.a("s_memrealtime s[%d:%d]" % (sreg, sreg + 1))

    def stamp_store(self, items, vt):
        if not self.stamps: return
        a = self.a
        a("s_waitcnt vmcnt(0) lgkmcnt(0)")
        a("s_lshl_b32 s90, s2, 7")
        a("s_add_u32 s90, s90, 0x%x" % WS_STAMP)
        a("v_mov_b32 v%d, s90" % vt)
        a("s_mov_b64 s[92:93], exec")
        a("s_mov_b64 exec, 1")
        for slot, sreg in items:
            a("v_mov_b32 v%d, s%d" % (vt + 2, sreg))
            a("v_mov_b32 v%d, s%d" % (vt + 3, sreg + 1))
            a("global_store_dwordx2 v%d, v[%d:%d], s[38:39] offset:%d" % (vt, vt + 2, vt + 3, slot * 8))
            a("s_nop 1")
        a("s_mov_b64 exec, s[92:93]")

    def tag(self, regs, vT, sMask):
        for r in regs:
            self.a("v_add_u32 v%d, 0x800, v%d" % (r, r))
        for r in regs:
            self.a("v_and_or_b32 v%d, v%d, s%d, v%d" % (r, r, sMask, vT))

    def poll(self, loads, regs, vT, vacc, scnt, name):
        a = self.a
        lp = a.newlabel("L_poll_" + name); ok = a.newlabel("L_ok_" + name)
        a("s_mov_b32 s%d, %d" % (scnt, SPIN))
        a.fence(4)
        a.label(lp)
        for l in loads: a(l)
        a("s_waitcnt vmcnt(0)")
        for r in regs:
            a("v_xor_b32 v%d, v%d, v%d" % (r, r, vT))
        first = True
        rs = list(regs)
        a("v_or3_b32 v%d, v%d, v%d, v%d" % (vacc, rs[0], rs[1], rs[2]))
        rs = rs[3:]
        while len(rs) >= 2:
            a("v_or3_b32 v%d, v%d, v%d, v%d" % (vacc, vacc, rs[0], rs[1])); rs = rs[2:]
        if rs: a("v_or_b32 v%d, v%d, v%d" % (vacc, vacc, rs[0]))
        a("v_and_b32 v%d, 0xfff, v%d" % (vacc, vacc))
        a("v_cmp_ne_u32 vcc, 0, v%d" % vacc)
        a("s_nop 1")
        a("s_cbranch_vccz %s" % ok)
        a("s_sub_u32 s%d, s%d, 1" % (scnt, scnt))
        a("s_cbranch_scc1 %s" % ok)
        a("s_sleep 1")
        a("s_branch %s" % lp)
        a.label(ok)
        a.fence(2)

    def masks(self, M, vl, t0, t1):
        a = self.a
        a("v_and_b32 v%d, 1, v%d" % (t0, vl))
        a("v_cmp_eq_u32 vcc, 1, v%d" % t0)
        a("v_mov_b32 v%d, 0xffff" % t0)
        a("v_mov_b32 v%d, 0xffff0000" % t1)
        a("v_cndmask_b32 v%d, v%d, v%d, vcc" % (t0, t0, t1))
        a("v_bfe_u32 v%d, v%d, 1, 2" % (t1, vl))
        for rho in range(4):
            a("v_cmp_eq_u32 vcc, %d, v%d" % (rho, t1))
            a("v_cndmask_b32 v%d, 0, v%d, vcc" % (M + rho, t0))

    def ln(self, X, F, T, vl, ldsbase, AT, vaddr):
        a = self.a
        for k in range(10):
            a("v_lshlrev_b32 v%d, 16, v%d" % (F + 2 * k, X + k))
            a("v_and_b32 v%d, 0xffff0000, v%d" % (F + 2 * k + 1, X + k))
        P = lambda r: "v[%d:%d]" % (r, r + 1)
        for k in range(5):
            a("v_pk_add_f32 %s, %s, %s" % (P(T + 2 * k), P(F + 4 * k), P(F + 4 * k + 2)))
        a("v_pk_add_f32 %s, %s, %s" % (P(T), P(T), P(T + 2)))
        a("v_pk_add_f32 %s, %s, %s" % (P(T + 4), P(T + 4), P(T + 6)))
        a("v_pk_add_f32 %s, %s, %s" % (P(T), P(T), P(T + 8)))
        a("v_pk_add_f32 %s, %s, %s" % (P(T), P(T), P(T + 4)))
        S, U = T + 10, T + 11
        a("v_add_f32 v%d, v%d, v%d" % (S, T, T + 1))
        self.allreduce32(S, U)
        MEAN = T + 8
        a("v_mul_f32 v%d, 0x%x, v%d" % (MEAN, f2u(1.0 / 640), S))
        NM = T + 6
        a("v_sub_f32 v%d, 0, v%d" % (NM, MEAN))
        a("v_sub_f32 v%d, 0, v%d" % (NM + 1, MEAN))
        ACC = T + 4
        a("v_mov_b32 v%d, 0" % ACC); a("v_mov_b32 v%d, 0" % (ACC + 1))
        for k in range(10):
            t = T + 2 * (k & 1)
            a("v_pk_add_f32 %s, %s, %s" % (P(t), P(F + 2 * k), P(NM)))
            a("v_pk_fma_f32 %s, %s, %s, %s" % (P(ACC), P(t), P(t), P(ACC)))
        a("v_add_f32 v%d, v%d, v%d" % (S, ACC, ACC + 1))
        self.allreduce32(S, U)
        a("v_mul_f32 v%d, 0x%x, v%d" % (S, f2u(1.0 / 640), S))
        a("v_cvt_pk_bf16_f32 v%d, v%d, v%d" % (U, MEAN, S))
        a("v_lshlrev_b32 v%d, 16, v%d" % (MEAN, U))
        a("v_and_b32 v%d, 0xffff0000, v%d" % (S, U))
        a("v_add_f32 v%d, 0x%x, v%d" % (S, f2u(1e-5), S))
        a("v_cvt_pk_bf16_f32 v%d, v%d, v%d" % (S, S, S))
        a("v_and_b32 v%d, 0xffff0000, v%d" % (S, S))
        a("v_sqrt_f32 v%d, v%d" % (S, S))
        a("v_cvt_pk_bf16_f32 v%d, v%d, v%d" % (S, S, S))
        a("v_and_b32 v%d, 0xffff0000, v%d" % (S, S))
        R = T + 4
        a("v_rcp_f32 v%d, v%d" % (R, S))
        a("v_sub_f32 v%d, 0, v%d" % (NM, MEAN))
        a("v_sub_f32 v%d, 0, v%d" % (NM + 1, MEAN))
        a("v_mov_b32 v%d, v%d" % (R + 1, R))
        for k in range(10):
            t = T + 2 * (k & 1)
            f = F + 2 * k
            a("v_pk_add_f32 %s, %s, %s" % (P(t), P(f), P(NM)))
            a("v_cvt_pk_bf16_f32 v%d, v%d, v%d" % (S, t, t + 1))
            a("v_lshlrev_b32 v%d, 16, v%d" % (t, S))
            a("v_and_b32 v%d, 0xffff0000, v%d" % (t + 1, S))
            a("v_pk_mul_f32 %s, %s, %s" % (P(t), P(t), P(R)))
            a("v_cvt_pk_bf16_f32 v%d, v%d, v%d" % (f, t, t))
            a("v_cvt_pk_bf16_f32 v%d, v%d, v%d" % (f + 1, t + 1, t + 1))
        a("v_mul_u32_u24 v%d, 80, v%d" % (vaddr, vl))
        for k in range(5):
            a("ds_write_b128 v%d, %s offset:%d" % (vaddr, vr(F + 4 * k), ldsbase + 16 * k))
        a("v_bfe_u32 v%d, v%d, 3, 1" % (S, vl))
        a("v_mul_u32_u24 v%d, 2560, v%d" % (S, S))
        a("v_lshrrev_b32 v%d, 4, v%d" % (U, vl))
        a("v_mul_u32_u24 v%d, 80, v%d" % (U, U))
        a("s_mul_i32 s60, s5, 320")
        a("v_add3_u32 v%d, v%d, v%d, s60" % (vaddr, S, U))
        a("s_waitcnt lgkmcnt(0)")
        for k in range(5):
            a("ds_read_b128 %s, v%d offset:%d" % (vr(AT + 4 * k), vaddr, ldsbase + 16 * k))

    def rc_chain(self, n, AT, W, M, A0, A1, ACC, vm_after, lgk_first=True):
        a = self.a
        As = (A0, A1)
        def build(t):
            for rho in range(4):
                a("v_and_b32 v%d, v%d, v%d" % (As[t & 1] + rho, AT + t, M + rho))
        build(0)
        if n > 1: build(1)
        for t in range(n):
            a("s_waitcnt vmcnt(%d)" % min(63, vm_after + n - 1 - t))
            a("v_mfma_f32_16x16x32_bf16 %s, %s, %s, %s" % (vr(ACC), vr(As[t & 1]), vr(W + 4 * t), "0" if t == 0 else vr(ACC)))
            if t + 2 < n: build(t + 2)

    def rec_addr(self, vd, vl, t0):
        a = self.a
        a("v_lshrrev_b32 v%d, 5, v%d" % (t0, vl))
        a("v_lshlrev_b32 v%d, 9, v%d" % (vd, t0))
        a("v_and_b32 v%d, 15, v%d" % (t0, vl))
        a("v_lshl_add_u32 v%d, v%d, 5, v%d" % (vd, t0, vd))
        a("v_and_b32 v%d, 16, v%d" % (t0, vl))
        a("v_add_u32 v%d, v%d, v%d" % (vd, vd, t0))

    def roleA(self):
        a = self.a
        X, E, F, T = 4, 14, 16, 36
        W, AT, M, A0, A1, ACC = 48, 128, 148, 152, 156, 160
        a("s_setprio 3")
        self.srd(40, 16, 2560)
        self.srd(44, 22, 5242880)
        self.srd(48, 38, WS_SIZE)
        a("v_mul_u32_u24 v46, 40, v1")
        a("buffer_load_dwordx4 v[4:7], v46, s[40:43], 0 offen")
        a("buffer_load_dwordx4 v[8:11], v46, s[40:43], 0 offen offset:16")
        a("buffer_load_dwordx2 v[12:13], v46, s[40:43], 0 offen offset:32")
        a("v_mov_b32 v47, 0")
        a("buffer_load_dword v14, v47, s[48:51], 0 offen sc1")
        a("v_mul_u32_u24 v46, 160, v3")
        a("v_lshlrev_b32 v46, 10, v46")
        a("v_lshl_add_u32 v46, v2, 4, v46")
        a("s_mul_i32 s52, s5, %d" % (80 * 8192))
        a("s_lshl_b32 s53, s4, 8")
        a("s_add_u32 s52, s52, s53")
        for t in range(20):
            a("buffer_load_dwordx4 %s, v46, s[44:47], s52 offen %s" % (vr(W + 4 * t), self.wflags))
            if t < 19: a("s_add_u32 s52, s52, 8192")
        a("v_mov_b32 v164, %d" % L_FLAG)
        a("ds_write_b32 v164, v47")
        a("s_waitcnt lgkmcnt(0)")
        a("s_barrier")
        self.masks(M, 1, 166, 167)
        a("s_waitcnt vmcnt(21)")
        self.ln(X, F, T, 1, L_XA, AT, 46)
        a("s_waitcnt lgkmcnt(0)")
        self.rc_chain(20, AT, W, M, A0, A1, ACC, 0)
        a("v_add_u32 v15, 1, v14")
        a("v_and_b32 v15, 0xfff, v15")
        a("s_mov_b32 s54, 0xfffff000")
        self.rec_addr(46, 1, 47)
        a("s_lshl_b32 s55, s4, 3")
        a("s_add_u32 s55, s55, s5")
        a("s_lshl_b32 s55, s55, 10")
        a("s_add_u32 s56, s55, 0x%x" % WS_Q1)
        self.tag([ACC, ACC + 1, ACC + 2, ACC + 3], 15, 54)
        a("buffer_store_dwordx4 %s, v46, s[48:51], s56 offen sc1" % vr(ACC))
        self.stamp(70)
        a("v_lshrrev_b32 v46, 5, v1")
        a("v_lshlrev_b32 v46, 10, v46")
        a("v_and_b32 v47, 31, v1")
        a("v_lshl_add_u32 v46, v47, 4, v46")
        a("s_lshl_b32 s56, s4, 13")
        a("s_lshr_b32 s57, s5, 2")
        a("s_lshl_b32 s57, s57, 9")
        a("s_add_u32 s56, s56, s57")
        a("s_add_u32 s56, s56, 0x%x" % WS_Q1)
        a("s_add_u32 s57, s56, 4096")
        G = 48
        loads = ["buffer_load_dwordx4 %s, v46, s[48:51], s56 offen sc1" % vr(G),
                 "buffer_load_dwordx4 %s, v46, s[48:51], s56 offen offset:2048 sc1" % vr(G + 4),
                 "buffer_load_dwordx4 %s, v46, s[48:51], s57 offen sc1" % vr(G + 8),
                 "buffer_load_dwordx4 %s, v46, s[48:51], s57 offen offset:2048 sc1" % vr(G + 12)]
        self.poll(loads, list(range(G, G + 16)), 15, 64, 58, "q")
        P = lambda r: "v[%d:%d]" % (r, r + 1)
        for k in (0, 2):
            a("v_pk_add_f32 %s, %s, %s" % (P(G + k), P(G + k), P(G + 4 + k)))
            a("v_pk_add_f32 %s, %s, %s" % (P(G + 8 + k), P(G + 8 + k), P(G + 12 + k)))
            a("v_pk_add_f32 %s, %s, %s" % (P(G + k), P(G + k), P(G + 8 + k)))
        for r in range(4):
            a("v_mov_b32 v%d, v%d" % (G + 4 + r, G + r))
        for r in range(4):
            a("v_permlane32_swap_b32 v%d, v%d" % (G + r, G + 4 + r))
        for r in range(4):
            a("v_add_f32 v%d, v%d, v%d" % (G + r, G + r, G + 4 + r))
        a("v_cvt_pk_bf16_f32 v%d, v%d, v%d" % (G + 8, G, G + 1))
        a("v_cvt_pk_bf16_f32 v%d, v%d, v%d" % (G + 9, G + 2, G + 3))
        a("v_lshlrev_b32 v47, 3, v47")
        a("ds_write_b64 v47, %s offset:%d" % (P(G + 8), L_QL))
        a("v_mov_b32 v%d, v15" % (G + 10))
        a("v_mov_b32 v%d, v14" % (G + 11))
        a("ds_write_b64 v164, %s offset:4" % P(G + 10))
        a("s_waitcnt lgkmcnt(0)")
        a("v_mov_b32 v%d, 1" % (G + 12))
        a("ds_write_b32 v164, v%d" % (G + 12))
        self.stamp(72)
        self.stamp_store([(1, 70), (2, 72)], 100)
        a("s_endpgm")

    def roleB(self):
        a = self.a
        X, E, F, T = 4, 14, 16, 36
        W, AT, M, A0, A1, ACC = 48, 128, 148, 152, 156, 160
        a("s_setprio 3")
        a("s_cmp_ge_u32 s4, 27")
        lskip = a.newlabel("L_B_skip")
        a("s_cbranch_scc1 %s" % lskip)
        self.srd(40, 16, 2560)
        self.srd(44, 32, 1728 * 1280)
        self.srd(48, 38, WS_SIZE)
        a("v_mul_u32_u24 v46, 40, v1")
        a("buffer_load_dwordx4 v[4:7], v46, s[40:43], 0 offen")
        a("buffer_load_dwordx4 v[8:11], v46, s[40:43], 0 offen offset:16")
        a("buffer_load_dwordx2 v[12:13], v46, s[40:43], 0 offen offset:32")
        a("v_mov_b32 v47, 0")
        a("buffer_load_dword v14, v47, s[48:51], 0 offen sc1")
        a("s_mov_b32 s52, 0xff00ff00")
        a("s_mov_b32 s53, 0xff00ff00")
        a("v_mov_b32 v164, s28"); a("v_mov_b32 v165, s30")
        a("v_cndmask_b32 v164, v164, v165, s[52:53]")
        a("v_mov_b32 v165, s29"); a("v_mov_b32 v166, s31")
        a("v_cndmask_b32 v165, v165, v166, s[52:53]")
        a("v_mul_u32_u24 v46, %d, v3" % (20 * 3456))
        a("v_and_b32 v47, 7, v1")
        a("v_lshl_add_u32 v46, v47, 4, v46")
        a("s_mul_i32 s54, s5, %d" % (80 * 3456))
        a("s_lshl_b32 s55, s4, 7")
        a("s_add_u32 s54, s54, s55")
        a("s_add_u32 s54, s54, 3456")
        a("v_add_u32 v46, s54, v46")
        a("v_add_co_u32 v164, vcc, v46, v164")
        a("v_addc_co_u32 v165, vcc, 0, v165, vcc")
        for t in range(20):
            off = (t % 3 - 1) * 3456
            a("global_load_dwordx4 %s, v[164:165], off offset:%d %s" % (vr(W + 4 * t), off, self.wflags))
            if t % 3 == 2 and t < 19:
                a("v_add_co_u32 v164, vcc, %d, v164" % (3 * 3456))
                a("v_addc_co_u32 v165, vcc, 0, v165, vcc")
        a("s_barrier")
        self.masks(M, 1, 164, 165)
        a("s_waitcnt vmcnt(21)")
        self.ln(X, F, T, 1, L_XB, AT, 46)
        a("s_waitcnt lgkmcnt(0)")
        self.rc_chain(20, AT, W, M, A0, A1, ACC, 0)
        a("v_add_u32 v15, 1, v14")
        a("v_and_b32 v15, 0xfff, v15")
        a("s_mov_b32 s54, 0xfffff000")
        self.rec_addr(46, 1, 47)
        a("s_lshl_b32 s55, s4, 3")
        a("s_add_u32 s55, s55, s5")
        a("s_lshl_b32 s55, s55, 10")
        a("s_add_u32 s56, s55, 0x%x" % WS_G1)
        self.tag([ACC, ACC + 1, ACC + 2, ACC + 3], 15, 54)
        a("buffer_store_dwordx4 %s, v46, s[48:51], s56 offen sc1" % vr(ACC))
        a("s_cmp_lt_u32 s5, 3")
        ldone = a.newlabel("L_B_done")
        a("s_cbranch_scc1 %s" % ldone)
        a("v_mul_u32_u24 v47, %d, v3" % (16 * 1280))
        a("v_lshl_add_u32 v47, v2, 4, v47")
        a("s_mul_i32 s56, s4, %d" % (64 * 1280))
        a("s_sub_u32 s57, s5, 3")
        a("s_lshl_b32 s59, s57, 8")
        a("s_add_u32 s56, s56, s59")
        for t in range(16):
            a("buffer_load_dwordx4 %s, v47, s[44:47], s56 offen offset:%d %s" % (vr(W + 4 * t), (t % 4) * 1280, self.wflags))
            if t % 4 == 3 and t < 15: a("s_add_u32 s56, s56, 5120")
        G = 112
        a("v_lshlrev_b32 v47, 4, v1")
        a("s_lshl_b32 s56, s4, 13")
        a("s_add_u32 s56, s56, 0x%x" % WS_G1)
        a("s_add_u32 s59, s56, 4096")
        loads = []
        for p in range(8):
            loads.append("buffer_load_dwordx4 %s, v47, s[48:51], s%d offen offset:%d sc1" % (vr(G + 4 * p), 56 if p < 4 else 59, (p % 4) * 1024))
        self.poll(loads, list(range(G, G + 32)), 15, 164, 58, "g")
        P = lambda r: "v[%d:%d]" % (r, r + 1)
        for st in (16, 8, 4):
            for q in range(0, st, 2):
                a("v_pk_add_f32 %s, %s, %s" % (P(G + q), P(G + q), P(G + st + q)))
        a("v_cvt_pk_bf16_f32 v%d, v%d, v%d" % (G + 4, G, G + 1))
        a("v_cvt_pk_bf16_f32 v%d, v%d, v%d" % (G + 5, G + 2, G + 3))
        a("v_lshlrev_b32 v%d, 16, v%d" % (G, G + 4))
        a("v_and_b32 v%d, 0xffff0000, v%d" % (G + 1, G + 4))
        a("v_lshlrev_b32 v%d, 16, v%d" % (G + 2, G + 5))
        a("v_and_b32 v%d, 0xffff0000, v%d" % (G + 3, G + 5))
        U = G + 8
        for r in range(4): a("v_mov_b32 v%d, v%d" % (U + r, G + r))
        for r in range(4): a("v_permlane16_swap_b32 v%d, v%d" % (G + r, U + r))
        K0 = -2.0 * 1.4426950408889634 * 0.7978845608028654
        K1 = K0 * 0.044715
        Tm = G + 12
        a("v_mov_b32 v%d, 0x%x" % (G + 20, f2u(K0)))
        a("v_mov_b32 v%d, 0x%x" % (G + 21, f2u(K1)))
        for r in range(4): a("v_mul_f32 v%d, v%d, v%d" % (Tm + r, G + r, G + r))
        for r in range(4): a("v_fma_f32 v%d, v%d, v%d, v%d" % (Tm + r, Tm + r, G + 21, G + 20))
        for r in range(4): a("v_mul_f32 v%d, v%d, v%d" % (Tm + r, Tm + r, G + r))
        for r in range(4): a("v_exp_f32 v%d, v%d" % (Tm + r, Tm + r))
        for r in range(4): a("v_add_f32 v%d, 1.0, v%d" % (Tm + r, Tm + r))
        for r in range(4): a("v_rcp_f32 v%d, v%d" % (Tm + r, Tm + r))
        for r in range(4): a("v_mul_f32 v%d, v%d, v%d" % (Tm + r, Tm + r, G + r))
        a("v_cvt_pk_bf16_f32 v%d, v%d, v%d" % (G + 4, Tm, Tm + 1))
        a("v_cvt_pk_bf16_f32 v%d, v%d, v%d" % (G + 5, Tm + 2, Tm + 3))
        a("v_lshlrev_b32 v%d, 16, v%d" % (Tm, G + 4))
        a("v_and_b32 v%d, 0xffff0000, v%d" % (Tm + 1, G + 4))
        a("v_lshlrev_b32 v%d, 16, v%d" % (Tm + 2, G + 5))
        a("v_and_b32 v%d, 0xffff0000, v%d" % (Tm + 3, G + 5))
        for r in range(4): a("v_mul_f32 v%d, v%d, v%d" % (Tm + r, Tm + r, U + r))
        for r in range(4): a("v_cvt_pk_bf16_f32 v%d, v%d, v%d" % (G + r, Tm + r, Tm + r))
        a("v_lshrrev_b32 v46, 5, v1")
        a("v_lshlrev_b32 v46, 8, v46")
        a("v_lshl_add_u32 v46, v2, 4, v46")
        a("ds_write_b128 v46, %s offset:%d" % (vr(G), L_HB))
        a("v_bfe_u32 v46, v1, 3, 1")
        a("v_lshlrev_b32 v46, 8, v46")
        a("v_lshl_add_u32 v46, v3, 6, v46")
        a("s_waitcnt lgkmcnt(0)")
        AT2 = 128
        for k in range(4):
            a("ds_read_b128 %s, v46 offset:%d" % (vr(AT2 + 4 * k), L_HB + 16 * k))
        a("s_waitcnt lgkmcnt(0)")
        self.rc_chain(16, AT2, W, M, A0, A1, ACC, 0)
        self.rec_addr(46, 1, 47)
        a("s_lshl_b32 s56, s57, 5")
        a("s_add_u32 s56, s56, s4")
        a("s_lshl_b32 s56, s56, 10")
        a("s_add_u32 s56, s56, 0x%x" % WS_F3)
        self.tag([ACC, ACC + 1, ACC + 2, ACC + 3], 15, 54)
        a("buffer_store_dwordx4 %s, v46, s[48:51], s56 offen sc1" % vr(ACC))
        self.stamp(70)
        self.stamp_store([(3, 70)], 100)
        a.label(ldone)
        a("s_endpgm")
        a.label(lskip)
        a("s_barrier")
        a("s_endpgm")

    def roleS(self):
        a = self.a
        K, V, AQ, D0, D1, S = 8, 72, 136, 152, 156, 160
        a("s_sub_u32 s3, s3, 2")
        self.srd(40, 18, 0x8000000)
        self.srd(44, 20, 0x8000000)
        self.srd(48, 38, WS_SIZE)
        a("s_cmp_lt_u32 s5, 5")
        a("s_cselect_b32 s61, 5242880, 0")
        self.srd(52, 24, "s61")
        a("s_lshr_b32 s6, s5, 2")
        a("s_and_b32 s7, s5, 3")
        a("s_lshl_b32 s56, s6, 5")
        a("s_add_u32 s56, s56, s4")
        a("s_lshl_b32 s56, s56, 21")
        a("s_lshl_b32 s57, s7, 17")
        a("s_add_u32 s56, s56, s57")
        a("s_lshl_b32 s57, s3, 14")
        a("s_add_u32 s56, s56, s57")
        a("s_add_u32 s56, s56, 0x180000")
        a("v_bfe_u32 v4, v1, 2, 2")
        a("v_lshlrev_b32 v4, 8, v4")
        a("v_lshl_add_u32 v4, v3, 6, v4")
        a("v_and_b32 v5, 3, v1")
        a("v_lshl_add_u32 v4, v5, 4, v4")
        a("v_lshlrev_b32 v5, 10, v3")
        a("v_lshl_add_u32 v5, v2, 4, v5")
        a("s_barrier")
        for g in range(4):
            a("s_add_u32 s57, s56, %d" % (g * 4096))
            for t in range(4):
                a("buffer_load_dwordx4 %s, v4, s[40:43], s57 offen offset:%d %s" % (vr(K + 16 * g + 4 * t), t * 1024, self.kvflags))
        for g in range(4):
            a("s_add_u32 s57, s56, %d" % (g * 4096))
            for u in range(4):
                a("buffer_load_dwordx4 %s, v5, s[44:47], s57 offen offset:%d %s" % (vr(V + 16 * g + 4 * u), u * 256, self.kvflags))
        a("v_mov_b32 v6, %d" % L_FLAG)
        lp = a.newlabel("L_qw"); ok = a.newlabel("L_qok")
        a("s_mov_b32 s58, %d" % (SPIN * 8))
        a.label(lp)
        a("ds_read_b32 v7, v6")
        a("s_waitcnt lgkmcnt(0)")
        a("v_cmp_eq_u32 vcc, 1, v7")
        a("s_nop 1")
        a("s_cbranch_vccnz %s" % ok)
        a("s_sub_u32 s58, s58, 1")
        a("s_cbranch_scc1 %s" % ok)
        a("s_sleep 2")
        a("s_branch %s" % lp)
        a.label(ok)
        a("v_and_b32 v7, 3, v1")
        a("v_lshl_add_u32 v7, v3, 2, v7")
        a("v_lshlrev_b32 v7, 4, v7")
        a("ds_read_b128 %s, v7 offset:%d" % (vr(D0), L_QL))
        a("ds_read_b64 v[164:165], v6 offset:4")
        for t in range(4):
            m = 0xF << (4 * t); m |= m << 16
            a("s_mov_b32 s%d, 0x%x" % (62 + 2 * t, m)); a("s_mov_b32 s%d, 0x%x" % (63 + 2 * t, m))
        a("s_waitcnt lgkmcnt(0)")
        for t in range(4):
            for r in range(4):
                a("v_cndmask_b32 v%d, 0, v%d, s[%d:%d]" % (AQ + 4 * t + r, D0 + r, 62 + 2 * t, 63 + 2 * t))
        Ds = (D0, D1)
        def diag(g):
            D = Ds[g & 1]
            a("v_mov_b32_dpp v%d, v%d quad_perm:[0,0,0,0] row_mask:0xf bank_mask:0xf" % (S + g, D))
            a("v_mov_b32_dpp v6, v%d quad_perm:[2,2,2,2] row_mask:0xf bank_mask:0xf" % (D + 2))
            a("v_add_f32_dpp v%d, v%d, v%d quad_perm:[1,1,1,1] row_mask:0xf bank_mask:0xf" % (S + g, D + 1, S + g))
            a("v_add_f32_dpp v6, v%d, v6 quad_perm:[3,3,3,3] row_mask:0xf bank_mask:0xf" % (D + 3))
            a("v_add_f32 v%d, v%d, v6" % (S + g, S + g))
        for g in range(4):
            for t in range(4):
                idx = 4 * g + t
                a("s_waitcnt vmcnt(%d)" % (31 - idx))
                a("v_mfma_f32_16x16x32_bf16 %s, %s, %s, %s" % (vr(Ds[g & 1]), vr(AQ + 4 * t), vr(K + 16 * g + 4 * t), "0" if t == 0 else vr(Ds[g & 1])))
            if g > 0: diag(g - 1)
        diag(3)
        self.stamp(70)
        a("v_mul_u32_u24 v4, 5120, v3")
        a("v_lshl_add_u32 v4, v2, 4, v4")
        a("s_lshl_b32 s57, s4, 3")
        a("s_add_u32 s57, s57, s3")
        a("s_mul_i32 s57, s57, %d" % (16 * 1280))
        a("s_lshl_b32 s58, s5, 8")
        a("s_add_u32 s57, s57, s58")
        for t in range(4):
            a("buffer_load_dwordx4 %s, v4, s[52:55], s57 offen offset:%d %s" % (vr(K + 4 * t), t * 1280, self.wflags))
        for rep in range(2):
            a("v_cvt_pk_bf16_f32 v6, v%d, v%d" % (S, S + 1))
            a("v_cvt_pk_bf16_f32 v7, v%d, v%d" % (S + 2, S + 3))
            a("v_lshlrev_b32 v%d, 16, v6" % S)
            a("v_and_b32 v%d, 0xffff0000, v6" % (S + 1))
            a("v_lshlrev_b32 v%d, 16, v7" % (S + 2))
            a("v_and_b32 v%d, 0xffff0000, v7" % (S + 3))
            if rep == 0:
                for r in range(4): a("v_mul_f32 v%d, 0x%x, v%d" % (S + r, f2u(128 ** -0.5), S + r))
        a("v_max3_f32 v6, v%d, v%d, v%d" % (S, S + 1, S + 2))
        a("v_max_f32 v6, v6, v%d" % (S + 3))
        self.dpp("v_max_f32", 6, 6, 6, "row_ror:4")
        self.dpp("v_max_f32", 6, 6, 6, "row_ror:8")
        self.cross_rows(6, 7, "v_max_f32")
        a("s_lshl_b32 s57, s3, 2")
        a("v_mov_b32 v7, s57")
        a("s_mov_b64 exec, 1")
        a("ds_write_b32 v7, v6 offset:%d" % L_MX)
        a("s_mov_b64 exec, -1")
        MK, PA0, PA1 = 136, 140, 144
        self.masks(MK, 1, 148, 149)
        a("s_waitcnt lgkmcnt(0)")
        a("s_barrier")
        a("v_mov_b32 v7, 0")
        a("ds_read_b128 v[140:143], v7 offset:%d" % L_MX)
        a("ds_read_b128 v[144:147], v7 offset:%d" % (L_MX + 16))
        a("s_waitcnt lgkmcnt(0)")
        a("v_max3_f32 v6, v140, v141, v142")
        a("v_max3_f32 v7, v143, v144, v145")
        a("v_max3_f32 v6, v6, v146, v147")
        a("v_max_f32 v166, v6, v7")
        for r in range(4): a("v_sub_f32 v%d, v%d, v166" % (S + r, S + r))
        for r in range(4): a("v_mul_f32 v%d, 0x%x, v%d" % (S + r, LOG2E, S + r))
        for r in range(4): a("v_exp_f32 v%d, v%d" % (S + r, S + r))
        LP = 156
        a("v_add_f32 v%d, v%d, v%d" % (LP, S, S + 1))
        a("v_add_f32 v6, v%d, v%d" % (S + 2, S + 3))
        a("v_add_f32 v%d, v%d, v6" % (LP, LP))
        for r in range(4): a("v_cvt_pk_bf16_f32 v%d, v%d, v%d" % (S + r, S + r, S + r))
        self.dpp("v_add_f32", LP, LP, LP, "row_ror:4")
        self.dpp("v_add_f32", LP, LP, LP, "row_ror:8")
        self.cross_rows(LP, 7)
        a("s_lshl_b32 s57, s3, 2")
        a("v_mov_b32 v7, s57")
        a("s_mov_b64 exec, 1")
        a("ds_write_b32 v7, v%d offset:%d" % (LP, L_LB))
        a("s_mov_b64 exec, -1")
        ACC = 152
        PAs = (PA0, PA1)
        def build(k):
            g, u = divmod(k, 4)
            for rho in range(4):
                a("v_and_b32_dpp v%d, v%d, v%d row_newbcast:%d row_mask:0xf bank_mask:0xf" % (PAs[k & 1] + rho, S + g, MK + rho, 4 * u))
        build(0); build(1)
        for k in range(16):
            a("s_waitcnt vmcnt(%d)" % (19 - k))
            a("v_mfma_f32_16x16x32_bf16 %s, %s, %s, %s" % (vr(ACC), vr(PAs[k & 1]), vr(V + 4 * k), "0" if k == 0 else vr(ACC)))
            if k + 2 < 16: build(k + 2)
        self.stamp(72)
        a("v_and_b32 v6, 16, v1")
        a("v_lshl_add_u32 v6, v2, 5, v6")
        a("s_lshl_b32 s57, s3, 9")
        a("v_add_u32 v6, s57, v6")
        a("ds_write_b128 v6, %s offset:%d" % (vr(ACC), L_OB))
        a("s_waitcnt lgkmcnt(0)")
        a("s_barrier")
        vT, vE, vM = 164, 165, 166
        P = lambda r: "v[%d:%d]" % (r, r + 1)
        a("s_mov_b32 s54, 0xfffff000") if False else None
        a("s_mov_b32 s60, 0xfffff000")
        lnp = a.newlabel("L_nopub")
        a("s_cmp_lg_u32 s3, 0")
        a("s_cbranch_scc1 %s" % lnp)
        a("v_lshrrev_b32 v6, 5, v1")
        a("v_lshlrev_b32 v6, 11, v6")
        a("v_and_b32 v7, 31, v1")
        a("v_lshl_add_u32 v6, v7, 4, v6")
        R = 72
        for k in range(4):
            a("ds_read_b128 %s, v6 offset:%d" % (vr(R + 4 * k), L_OB + 512 * k))
        a("v_mov_b32 v6, 0")
        a("ds_read_b128 %s, v6 offset:%d" % (vr(R + 16), L_LB))
        a("ds_read_b128 %s, v6 offset:%d" % (vr(R + 20), L_LB + 16))
        a("s_waitcnt lgkmcnt(2)")
        for k in (0, 2):
            a("v_pk_add_f32 %s, %s, %s" % (P(R + k), P(R + k), P(R + 4 + k)))
            a("v_pk_add_f32 %s, %s, %s" % (P(R + 8 + k), P(R + 8 + k), P(R + 12 + k)))
            a("v_pk_add_f32 %s, %s, %s" % (P(R + k), P(R + k), P(R + 8 + k)))
        for r in range(4): a("v_mov_b32 v%d, v%d" % (R + 4 + r, R + r))
        for r in range(4): a("v_permlane32_swap_b32 v%d, v%d" % (R + r, R + 4 + r))
        for r in range(4): a("v_add_f32 v%d, v%d, v%d" % (R + r, R + r, R + 4 + r))
        a("s_waitcnt lgkmcnt(0)")
        a("v_pk_add_f32 %s, %s, %s" % (P(R + 16), P(R + 16), P(R + 18)))
        a("v_pk_add_f32 %s, %s, %s" % (P(R + 20), P(R + 20), P(R + 22)))
        a("v_pk_add_f32 %s, %s, %s" % (P(R + 16), P(R + 16), P(R + 20)))
        a("v_add_f32 v%d, v%d, v%d" % (R + 16, R + 16, R + 17))
        a("s_mov_b32 s62, 0"); a("s_mov_b32 s63, -1")
        a("v_cndmask_b32 v%d, v%d, v%d, s[62:63]" % (R, R, vM))
        a("v_cndmask_b32 v%d, v%d, v%d, s[62:63]" % (R + 1, R + 1, R + 16))
        a("v_cndmask_b32 v%d, v%d, v%d, s[62:63]" % (R + 2, R + 2, vM))
        a("v_cndmask_b32 v%d, v%d, v%d, s[62:63]" % (R + 3, R + 3, R + 16))
        self.tag([R, R + 1, R + 2, R + 3], vT, 60)
        a("v_min_u32 v6, 32, v1")
        a("v_lshlrev_b32 v6, 4, v6")
        a("s_lshl_b32 s57, s4, 3")
        a("s_add_u32 s57, s57, s5")
        a("s_lshl_b32 s57, s57, 10")
        a("s_add_u32 s57, s57, 0x%x" % WS_O2)
        a("s_mov_b32 s62, -1"); a("s_mov_b32 s63, 1")
        a("s_mov_b64 exec, s[62:63]")
        a("buffer_store_dwordx4 %s, v6, s[48:51], s57 offen sc1" % vr(R))
        a("s_mov_b64 exec, -1")
        self.stamp(74)
        a.label(lnp)
        a.fence(3)
        lred = a.newlabel("L_red")
        a("s_cmp_ge_u32 s5, 5")
        a("s_cbranch_scc1 %s" % lred)
        a("v_bfe_u32 v6, v1, 2, 3")
        a("v_lshlrev_b32 v6, 10, v6")
        a("v_and_b32 v7, 3, v1")
        a("v_lshlrev_b32 v7, 4, v7")
        a("s_lshl_b32 s57, s3, 6")
        a("v_add_u32 v7, s57, v7")
        a("v_mov_b32 v4, 512")
        a("s_mov_b32 s62, 0"); a("s_mov_b32 s63, -1")
        a("v_cndmask_b32 v7, v7, v4, s[62:63]")
        a("v_add_u32 v6, v6, v7")
        a("s_lshl_b32 s57, s4, 13")
        a("s_add_u32 s57, s57, 0x%x" % WS_O2)
        R = 72
        self.poll(["buffer_load_dwordx4 %s, v6, s[48:51], s57 offen sc1" % vr(R)], [R, R + 1, R + 2, R + 3], vT, 7, 58, "o")
        self.stamp(76)
        Mx, Wt, Ls = R + 4, R + 5, R + 6
        self.dpp("v_max_f32", Mx, R, R, "row_ror:4")
        self.dpp("v_max_f32", Mx, Mx, Mx, "row_ror:8")
        a("v_sub_f32 v%d, v%d, v%d" % (Wt, R, Mx))
        a("v_mul_f32 v%d, 0x%x, v%d" % (Wt, LOG2E, Wt))
        a("v_exp_f32 v%d, v%d" % (Wt, Wt))
        a("v_mul_f32 v%d, v%d, v%d" % (Ls, Wt, R + 1))
        self.dpp("v_add_f32", Ls, Ls, Ls, "row_ror:4")
        self.dpp("v_add_f32", Ls, Ls, Ls, "row_ror:8")
        a("v_rcp_f32 v%d, v%d" % (Ls, Ls))
        a("v_mul_f32 v%d, v%d, v%d" % (Wt, Wt, Ls))
        a("v_mov_b32 v%d, v%d" % (Ls, Wt))
        a("v_permlane32_swap_b32 v%d, v%d" % (Wt, Ls))
        for r in range(4): a("v_mul_f32 v%d, v%d, v%d" % (R + r, R + r, Ls))
        for r in range(4): self.dpp("v_add_f32", R + r, R + r, R + r, "row_ror:4")
        for r in range(4): self.dpp("v_add_f32", R + r, R + r, R + r, "row_ror:8")
        for r in range(4): a("v_cvt_pk_bf16_f32 v%d, v%d, v%d" % (R + r, R + r, R + r))
        a("v_bfe_u32 v6, v1, 3, 1")
        a("v_lshlrev_b32 v6, 4, v6")
        a("v_add_u32 v6, v6, v3")
        a("v_lshlrev_b32 v6, 2, v6")
        AT = R + 8
        for r in range(4): a("ds_bpermute_b32 v%d, v6, v%d" % (AT + r, R + r))
        a("s_waitcnt lgkmcnt(0)")
        self.rc_chain(4, AT, K, MK, PA0, PA1, ACC, 0)
        self.rec_addr(6, 1, 7)
        a("s_lshl_b32 s57, s3, 10")
        a("v_add_u32 v6, s57, v6")
        a("ds_write_b128 v6, %s offset:%d" % (vr(ACC), L_YB))
        a("s_waitcnt lgkmcnt(0)")
        a("s_barrier")
        lend = a.newlabel("L_S_end")
        a("s_cmp_lg_u32 s3, 0")
        a("s_cbranch_scc1 %s" % lend)
        a("v_lshlrev_b32 v6, 4, v1")
        for k in range(8):
            a("ds_read_b128 %s, v6 offset:%d" % (vr(R + 4 * k), L_YB + 1024 * k))
        for st, wc in ((16, 0), (8, None), (4, None)):
            if wc is not None: a("s_waitcnt lgkmcnt(0)")
            for q in range(0, st, 2):
                a("v_pk_add_f32 %s, %s, %s" % (P(R + q), P(R + q), P(R + st + q)))
        self.tag([R, R + 1, R + 2, R + 3], vT, 60)
        a("s_lshl_b32 s57, s5, 5")
        a("s_add_u32 s57, s57, s4")
        a("s_lshl_b32 s57, s57, 10")
        a("s_add_u32 s57, s57, 0x%x" % WS_S3)
        a("buffer_store_dwordx4 %s, v6, s[48:51], s57 offen sc1" % vr(R))
        self.stamp(78)
        self.stamp_store([(0, 80), (4, 70), (5, 72), (6, 74), (7, 76), (8, 78)], 100)
        a.label(lend)
        a("s_endpgm")
        a.label(lred)
        a.fence(3)
        lend2 = a.newlabel("L_R_end")
        lw0 = a.newlabel("L_R_w0")
        a("s_cmp_eq_u32 s3, 0")
        a("s_cbranch_scc1 %s" % lw0)
        a("s_cmp_lg_u32 s3, 1")
        a("s_cbranch_scc1 %s" % lend2)
        a("s_sub_u32 s57, s5, 5")
        a("s_lshl_b32 s57, s57, 5")
        a("s_add_u32 s57, s57, s4")
        a("s_cmp_ge_u32 s57, 80")
        a("s_cbranch_scc1 %s" % lend2)
        a("s_lshr_b32 s62, s57, 4")
        a("s_bfe_u32 s63, s57, 0x10003")
        a("s_and_b32 s64, s57, 7")
        a("s_mul_i32 s65, s63, 1280")
        a("s_lshl_b32 s66, s62, 8")
        a("s_add_u32 s65, s65, s66")
        a("s_lshl_b32 s66, s64, 5")
        a("s_add_u32 s65, s65, s66")
        a("v_and_b32 v7, 3, v1")
        a("v_lshlrev_b32 v4, 3, v7")
        self.srd(40, 16, 2560)
        self.srd(44, 34, 2560)
        a("buffer_load_dwordx2 v[8:9], v4, s[40:43], s65 offen")
        a("v_lshrrev_b32 v6, 2, v1")
        a("v_lshlrev_b32 v5, 10, v6")
        a("v_lshl_add_u32 v5, v7, 4, v5")
        a("s_lshl_b32 s66, s63, 9")
        a("s_lshl_b32 s67, s64, 6")
        a("s_add_u32 s66, s66, s67")
        a("s_lshl_b32 s67, s62, 15")
        a("s_add_u32 s66, s66, s67")
        a("v_cmp_gt_u32 vcc, 11, v6")
        a("v_add_u32 v10, 0x4000, v5")
        a("v_cndmask_b32 v10, v5, v10, vcc")
        a("v_cndmask_b32 v11, 0, 1.0, vcc")
        a("s_add_u32 s67, s66, 0x%x" % WS_F3)
        R = 72
        self.poll(["buffer_load_dwordx4 %s, v5, s[48:51], s67 offen sc1" % vr(R),
                   "buffer_load_dwordx4 %s, v10, s[48:51], s67 offen sc1" % vr(R + 4)], list(range(R, R + 8)), vT, 12, 58, "f")
        for r in range(4): a("v_fma_f32 v%d, v%d, v11, v%d" % (R + r, R + 4 + r, R + r))
        def red(R):
            for r in range(4): self.dpp("v_add_f32", R + r, R + r, R + r, "row_ror:4")
            for r in range(4): self.dpp("v_add_f32", R + r, R + r, R + r, "row_ror:8")
            for r in range(4): a("v_mov_b32 v%d, v%d" % (R + 4 + r, R + r))
            for r in range(4): a("v_permlane16_swap_b32 v%d, v%d" % (R + r, R + 4 + r))
            for r in range(4): a("v_add_f32 v%d, v%d, v%d" % (R + r, R + r, R + 4 + r))
            for r in range(4): a("v_mov_b32 v%d, v%d" % (R + 4 + r, R + r))
            for r in range(4): a("v_permlane32_swap_b32 v%d, v%d" % (R + r, R + 4 + r))
            for r in range(4): a("v_add_f32 v%d, v%d, v%d" % (R + r, R + r, R + 4 + r))
        def rnd(R, t):
            a("v_cvt_pk_bf16_f32 v%d, v%d, v%d" % (t, R, R + 1))
            a("v_cvt_pk_bf16_f32 v%d, v%d, v%d" % (t + 1, R + 2, R + 3))
            a("v_lshlrev_b32 v%d, 16, v%d" % (R, t))
            a("v_and_b32 v%d, 0xffff0000, v%d" % (R + 1, t))
            a("v_lshlrev_b32 v%d, 16, v%d" % (R + 2, t + 1))
            a("v_and_b32 v%d, 0xffff0000, v%d" % (R + 3, t + 1))
        red(R)
        rnd(R, R + 8)
        Gt = R + 12
        for r in range(4): a("v_mul_f32 v%d, 0x%x, v%d" % (Gt + r, f2u(-1.4426950408889634), R + r))
        for r in range(4): a("v_exp_f32 v%d, v%d" % (Gt + r, Gt + r))
        for r in range(4): a("v_add_f32 v%d, 1.0, v%d" % (Gt + r, Gt + r))
        for r in range(4): a("v_rcp_f32 v%d, v%d" % (Gt + r, Gt + r))
        for r in range(4): a("v_mul_f32 v%d, v%d, v%d" % (Gt + r, Gt + r, R + r))
        rnd(Gt, R + 8)
        XR = R + 16
        a("v_lshlrev_b32 v%d, 16, v8" % XR)
        a("v_and_b32 v%d, 0xffff0000, v8" % (XR + 1))
        a("v_lshlrev_b32 v%d, 16, v9" % (XR + 2))
        a("v_and_b32 v%d, 0xffff0000, v9" % (XR + 3))
        self.stamp(76)
        a("v_add_u32 v10, 0x4000, v5")
        a("s_add_u32 s67, s66, 0x%x" % WS_S3)
        self.poll(["buffer_load_dwordx4 %s, v5, s[48:51], s67 offen sc1" % vr(R),
                   "buffer_load_dwordx4 %s, v10, s[48:51], s67 offen sc1" % vr(R + 4)], list(range(R, R + 8)), vT, 12, 58, "s")
        for r in range(4): a("v_add_f32 v%d, v%d, v%d" % (R + r, R + r, R + 4 + r))
        red(R)
        rnd(R, R + 8)
        for r in range(4): a("v_mul_f32 v%d, v%d, v%d" % (R + r, R + r, Gt + r))
        rnd(R, R + 8)
        for r in range(4): a("v_add_f32 v%d, v%d, v%d" % (R + r, R + r, XR + r))
        a("v_cvt_pk_bf16_f32 v%d, v%d, v%d" % (R + 8, R, R + 1))
        a("v_cvt_pk_bf16_f32 v%d, v%d, v%d" % (R + 9, R + 2, R + 3))
        a("s_mov_b64 exec, 15")
        a("buffer_store_dwordx2 %s, v4, s[44:47], s65 offen" % P(R + 8))
        a("s_cmp_lg_u32 s57, 0")
        lnb = a.newlabel("L_nobump")
        a("s_cbranch_scc1 %s" % lnb)
        a("s_mov_b64 exec, 1")
        a("v_add_u32 v6, 1, v%d" % vE)
        a("v_mov_b32 v7, 0")
        a("buffer_store_dword v6, v7, s[48:51], 0 offen sc1")
        a.label(lnb)
        a("s_mov_b64 exec, -1")
        self.stamp(78)
        self.stamp_store([(7, 76), (8, 78)], 100)
        a.label(lend2)
        a("s_endpgm")
        a.label(lw0)
        self.stamp_store([(0, 80), (4, 70), (5, 72), (6, 74)], 100)
        a("s_endpgm")

    def build(self):
        a = self.a
        a("s_cmp_ge_u32 s2, 256")
        a("s_cbranch_scc1 L_end")
        a("s_load_dwordx16 s[16:31], s[0:1], 0")
        a("s_load_dwordx8 s[32:39], s[0:1], 64")
        self.stamp(80)
        a("v_lshrrev_b32 v1, 6, v0")
        a("v_readfirstlane_b32 s3, v1")
        a("v_and_b32 v1, 63, v0")
        a("v_and_b32 v2, 15, v1")
        a("v_lshrrev_b32 v3, 4, v1")
        a("s_and_b32 s4, s2, 31")
        a("s_lshr_b32 s5, s2, 5")
        a("s_waitcnt lgkmcnt(0)")
        a("s_cmp_eq_u32 s3, 0")
        a("s_cbranch_scc1 L_A")
        a("s_cmp_eq_u32 s3, 1")
        a("s_cbranch_scc1 L_B")
        self.roleS()
        a.label("L_A"); a.fence(3)
        self.roleA()
        a.label("L_B"); a.fence(3)
        self.roleB()
        a.label("L_end")
        return wrap(a.text(), 256, 640, LDS_SIZE, 168)

if __name__ == "__main__":
    out = sys.argv[1] if len(sys.argv) > 1 else "k1.s"
    g = Gen(stamps=("--stamps" in sys.argv))
    open(out, "w").write(g.build())
    print("nops inserted:", g.a.nops, "lines", len(g.a.lines))
```
